```python
import torch

def _softmax(x, axis=-1):
    return torch.softmax(x, dim=axis)
def _gelu(x):
    return torch.nn.functional.gelu(x, approximate="tanh")
def _silu(x):
    return torch.nn.functional.silu(x)
def _sigmoid(x):
    return torch.sigmoid(x)
def _layernorm(x, axis=-1, eps=1e-5):
    m = x.mean(dim=axis, keepdim=True)
    v = x.var(dim=axis, keepdim=True, unbiased=False)
    return (x - m) / torch.sqrt(v + eps)
def _scatter_add(tgt, idx, src, axis=0):
    return tgt.clone().index_add_(axis, idx, src)
def _segment_sum(src, seg, n):
    out = torch.zeros((n,) + src.shape[1:], dtype=src.dtype)
    return out.index_add_(0, seg, src)
def _pad(x, pw):
    flat = tuple(v for pair in reversed(pw) for v in pair)
    return torch.nn.functional.pad(x, flat)

kernel_name = 'standalone__gqa_block_cached__near_ridge'

def setup_inputs():

    _w = (lambda a: (lambda t: t.to(torch.bfloat16) if t.is_floating_point() else t)(torch.as_tensor(a)))
    B, Sq, D = 8, 128, 512
    Hq, Hkv, Sk, Dh = 32, 32, 2048, 128
    assert Hq % Hkv == 0, (Hq, Hkv)
    return {
        "x": _w((lambda *s: torch.randn(*s, dtype=torch.bfloat16) * 0.8)(B, Sq, D)),
        "k_cache": _w((lambda *s: torch.randn(*s, dtype=torch.bfloat16) * 0.8)(B, Hkv, Sk, Dh)),
        "v_cache": _w((lambda *s: torch.randn(*s, dtype=torch.bfloat16) * 0.05)(B, Hkv, Sk, Dh)),
        "wq": _w((lambda *s: torch.randn(*s, dtype=torch.bfloat16) * 0.8)(D, Hq * Dh) * (D ** -0.5)),
        "wo": _w((lambda *s: torch.randn(*s, dtype=torch.bfloat16) * 0.05)(Hq * Dh, D) * ((Hq * Dh) ** -0.5)),
    }

def reference(x, k_cache, v_cache, wq, wo):
    B, Sq, D = x.shape
    Hq, Dh = 32, 128
    Hkv = k_cache.shape[1]
    rep = Hq // Hkv
    q = (lambda x, *d: x.permute(*d))((x @ wq).reshape(B, Sq, Hq, Dh), 0, 2, 1, 3)
    k = (lambda x, n, axis: torch.repeat_interleave(x, n, dim=axis))(k_cache, rep, axis=1)
    v = (lambda x, n, axis: torch.repeat_interleave(x, n, dim=axis))(v_cache, rep, axis=1)
    scores = torch.einsum("bhqd,bhkd->bhqk", q, k) * (Dh ** -0.5)
    p = _softmax(scores, axis=-1)
    o = torch.einsum("bhqk,bhkd->bhqd", p, v)
    return (lambda x, *d: x.permute(*d))(o, 0, 2, 1, 3).reshape(B, Sq, Hq * Dh) @ wo
```

```python
import sys
DBGQ = len(sys.argv) > 2

out = []
def E(s=""):
    out.append(s)

def vr(base, n=1):
    return f"v{base}" if n == 1 else f"v[{base}:{base+n-1}]"

HDR = """; Kernarg layout for this problem (64 bytes, ptrs only, base s[0:1]):
; @launch kernel=standalone__gqa_block_cached__near_ridge_kernel grid=(256,1,1) block=(256,1,1) lds=163840
; @launch kernel=oproj_kernel grid=(256,1,1) block=(256,1,1) lds=65536
.amdgcn_target "amdgcn-amd-amdhsa--gfx950"
.text
"""

V_TID = 0
V_L = 1
V_T0, V_T1, V_T2, V_T3 = 2, 3, 4, 5
V_M, V_LS, V_AL, V_MC = 6, 7, 8, 9
V_DK = 10
V_DV = 14
V_DW = 15
V_KA = 16
V_VA = 32
V_Q = 40
V_S = 72
V_P = 104
V_O = 120
V_KF = 184
V_VF = 216
NV1 = 248
V_X = 40
V_ACC = 184
V_WA = 168
V_WADDR = 16

S_K, S_V, S_X, S_W, S_O = 16, 20, 24, 28, 32
S_WAVE = 36
S_C = 37
S_T = 38
S_T2 = 39
S_TILE = 40
S_M0B = 41

def mfma(d, a, b, c=None):
    c = d if c is None else c
    E(f"  v_mfma_f32_32x32x16_bf16 {vr(d,16)}, {vr(a,4)}, {vr(b,4)}, {vr(c,16)}")

def dma_tile(slot):
    E(f"  s_add_u32 m0, s{S_M0B}, {slot*32768}")
    E("  s_nop 0")
    for jj in range(4):
        E(f"  buffer_load_dwordx4 v{V_DK+jj}, s[{S_K}:{S_K+3}], s{S_TILE} offen offset:{jj*1024} lds")
    E(f"  s_add_u32 m0, s{S_M0B}, {slot*32768+16384}")
    E("  s_nop 0")
    for jj in range(4):
        E(f"  buffer_load_dwordx4 v{V_DV}, s[{S_V}:{S_V+3}], s{S_TILE} offen offset:{jj*1024} lds")
    E(f"  s_add_u32 s{S_TILE}, s{S_TILE}, 16384")

def dma_wq(chunk, buf):
    for jj in range(8):
        E(f"  s_add_u32 m0, s{S_T2}, {buf + jj*1024}")
        E(f"  s_add_u32 s{S_T}, s{S_WAVE}, {(chunk*128 + jj*4)*8192}")
        E(f"  buffer_load_dwordx4 v{V_DW}, s[{S_W}:{S_W+3}], s{S_T} offen lds")

def qproj_chunk(chunk, buf):
    for kk in range(8):
        for db in range(4):
            for j in range(2):
                E(f"  ds_read_b64_tr_b16 {vr(V_WA+db*4+j*2,2)}, v{V_WADDR+db} offset:{buf - 3*32768 + kk*4096 + j*1024}")
        for db in range(4):
            E(f"  s_waitcnt lgkmcnt({6-2*db})")
            mfma(V_ACC+db*16, V_WA+db*4, V_X+(chunk*8+kk)*4)

def kernel1():
    E(".globl standalone__gqa_block_cached__near_ridge_kernel")
    E(".p2align 8")
    E(".type standalone__gqa_block_cached__near_ridge_kernel,@function")
    E("standalone__gqa_block_cached__near_ridge_kernel:")
    E("  s_cmp_ge_u32 s2, 256")
    E("  s_cbranch_scc1 L1_done")
    E("  s_load_dwordx4 s[4:7], s[0:1], 0")
    E("  s_load_dwordx4 s[8:11], s[0:1], 16")
    E("  s_load_dwordx2 s[12:13], s[0:1], 56")
    E(f"  v_and_b32 v{V_L}, 63, v0")
    E(f"  v_lshrrev_b32 v{V_T0}, 6, v0")
    E("  s_nop 0")
    E(f"  v_readfirstlane_b32 s{S_WAVE}, v{V_T0}")
    E("  s_waitcnt lgkmcnt(0)")
    E("  s_lshl_b32 s3, s2, 19")
    E(f"  s_add_u32 s{S_K}, s6, s3")
    E(f"  s_addc_u32 s{S_K+1}, s7, 0")
    E(f"  s_mov_b32 s{S_K+2}, 524288")
    E(f"  s_mov_b32 s{S_K+3}, 0x20000")
    E(f"  s_add_u32 s{S_V}, s8, s3")
    E(f"  s_addc_u32 s{S_V+1}, s9, 0")
    E(f"  s_mov_b32 s{S_V+2}, 524288")
    E(f"  s_mov_b32 s{S_V+3}, 0x20000")
    E("  s_lshr_b32 s14, s2, 5")
    E("  s_and_b32 s15, s2, 31")
    E("  s_lshl_b32 s3, s14, 17")
    E(f"  s_add_u32 s{S_X}, s4, s3")
    E(f"  s_addc_u32 s{S_X+1}, s5, 0")
    E(f"  s_mov_b32 s{S_X+2}, 131072")
    E(f"  s_mov_b32 s{S_X+3}, 0x20000")
    E("  s_lshl_b32 s3, s15, 8")
    E(f"  s_add_u32 s{S_W}, s10, s3")
    E(f"  s_addc_u32 s{S_W+1}, s11, 0")
    E(f"  s_sub_u32 s{S_W+2}, 0x400000, s3")
    E(f"  s_mov_b32 s{S_W+3}, 0x20000")
    E("  s_lshl_b32 s14, s14, 20")
    E("  s_add_u32 s14, s14, s3")
    E(f"  s_add_u32 s{S_O}, s12, s14")
    E(f"  s_addc_u32 s{S_O+1}, s13, 0")
    E(f"  s_sub_u32 s{S_O+2}, 0x100000, s3")
    E(f"  s_mov_b32 s{S_O+3}, 0x20000")
    E(f"  s_mov_b32 s{S_C}, 0x3e0293ee")
    l = V_L
    E(f"  v_and_b32 v{V_T0}, 15, v{l}")
    E(f"  v_lshrrev_b32 v{V_T1}, 4, v{l}")
    E(f"  v_xor_b32 v{V_T2}, v{V_T0}, v{V_T1}")
    E(f"  v_lshlrev_b32 v{V_T2}, 4, v{V_T2}")
    E(f"  v_lshl_add_u32 v{V_T2}, v{V_T1}, 8, v{V_T2}")
    for jj in range(4):
        E(f"  v_xor_b32 v{V_DK+jj}, {jj*64}, v{V_T2}")
    E(f"  v_lshlrev_b32 v{V_T2}, 2, v{V_T1}")
    E(f"  v_xor_b32 v{V_T2}, v{V_T2}, v{V_T0}")
    E(f"  v_lshlrev_b32 v{V_T2}, 4, v{V_T2}")
    E(f"  v_lshl_add_u32 v{V_DV}, v{V_T1}, 8, v{V_T2}")
    E(f"  v_lshl_add_u32 v{V_DW}, v{V_T1}, 13, v{V_T2}")
    E(f"  v_and_b32 v{V_T2}, 31, v{l}")
    E(f"  v_lshrrev_b32 v{V_T3}, 5, v{l}")
    E(f"  v_lshlrev_b32 v{V_T2}, 10, v{V_T2}")
    E(f"  v_lshl_add_u32 v{V_T2}, v{V_T3}, 4, v{V_T2}")
    E(f"  s_lshl_b32 s42, s{S_WAVE}, 15")
    E(f"  s_lshl_b32 s{S_M0B}, s{S_WAVE}, 12")
    E(f"  s_mov_b32 s{S_TILE}, s{S_M0B}")
    E(f"  s_lshl_b32 s{S_T2}, s{S_WAVE}, 13")
    E(f"  s_lshl_b32 s{S_WAVE}, s{S_WAVE}, 18")
    BUFA, BUFB = 3*32768, 4*32768
    dma_wq(0, BUFA)
    dma_wq(1, BUFB)
    for kk in range(32):
        E(f"  buffer_load_dwordx4 {vr(V_X+kk*4,4)}, v{V_T2}, s[{S_X}:{S_X+3}], s42 offen offset:{kk*32}")
    dma_tile(0)
    E(f"  v_lshrrev_b32 v{V_T0}, 2, v{l}")
    E(f"  v_and_b32 v{V_T0}, 3, v{V_T0}")
    E(f"  v_and_b32 v{V_T1}, 3, v{l}")
    E(f"  v_lshlrev_b32 v{V_T1}, 3, v{V_T1}")
    E(f"  v_bfe_u32 v{V_T2}, v{l}, 4, 1")
    E(f"  v_lshl_add_u32 v{V_T1}, v{V_T2}, 5, v{V_T1}")
    E(f"  v_lshl_add_u32 v{V_T1}, v{V_T0}, 8, v{V_T1}")
    for db in range(4):
        E(f"  v_xor_b32 v{V_T2}, {db}, v{V_T0}")
        E(f"  v_lshl_add_u32 v{V_T2}, v{V_T2}, 6, v{V_T1}")
        E(f"  v_lshl_add_u32 v{V_WADDR+db}, v{V_T3}, 11, v{V_T2}")
        E(f"  v_add_u32 v{V_WADDR+db}, 0x18000, v{V_WADDR+db}")
    for i in range(64):
        E(f"  v_mov_b32 v{V_ACC+i}, 0")
    E("  s_waitcnt vmcnt(8)")
    E("  s_barrier")
    dma_tile(1)
    dma_tile(2)
    qproj_chunk(0, BUFA)
    qproj_chunk(1, BUFB)
    E("  s_barrier")
    dma_wq(2, BUFA)
    dma_wq(3, BUFB)
    E("  s_waitcnt vmcnt(0)")
    E("  s_barrier")
    qproj_chunk(2, BUFA)
    qproj_chunk(3, BUFB)
    for db in range(4):
        E(f"  v_xor_b32 v{V_T2}, {db}, v{V_T0}")
        E(f"  v_lshl_add_u32 v{V_T2}, v{V_T2}, 6, v{V_T1}")
        E(f"  v_lshl_add_u32 v{V_VA+db}, v{V_T3}, 10, v{V_T2}")
        E(f"  v_add_u32 v{V_VA+4+db}, 0x10000, v{V_VA+db}")
    E(f"  v_and_b32 v{V_T0}, 15, v{l}")
    E(f"  v_xor_b32 v{V_T0}, v{V_T0}, v{V_T3}")
    E(f"  v_lshlrev_b32 v{V_T0}, 4, v{V_T0}")
    E(f"  v_and_b32 v{V_T1}, 31, v{l}")
    E(f"  v_lshl_add_u32 v{V_T0}, v{V_T1}, 8, v{V_T0}")
    for ks in range(8):
        E(f"  v_xor_b32 v{V_KA+ks}, {ks*32}, v{V_T0}")
        E(f"  v_add_u32 v{V_KA+8+ks}, 0x10000, v{V_KA+ks}")
    E("  s_nop 7")
    E("  s_nop 7")
    for db in range(4):
        for kh in range(2):
            q = V_Q + (db*2+kh)*4
            a = V_ACC + db*16 + kh*8
            for r in range(4):
                E(f"  v_cvt_pk_bf16_f32 v{q+r}, v{a+2*r}, v{a+2*r+1}")
            E("  s_nop 1")
            E(f"  v_permlane32_swap_b32 v{q}, v{q+2}")
            E(f"  v_permlane32_swap_b32 v{q+1}, v{q+3}")
    for i in range(64):
        E(f"  v_mov_b32 v{V_O+i}, 0")
    E(f"  v_mov_b32 v{V_M}, 0xff800000")
    E(f"  v_mov_b32 v{V_LS}, 0")
    E("  s_mov_b32 s3, 0")
    if DBGQ:
        E(f"  v_and_b32 v{V_T0}, 31, v{V_L}")
        E(f"  v_lshrrev_b32 v{V_T3}, 5, v{V_L}")
        E(f"  v_lshlrev_b32 v{V_T0}, 13, v{V_T0}")
        E(f"  v_lshl_add_u32 v{V_T0}, v{V_T3}, 4, v{V_T0}")
        for ks in range(8):
            E(f"  buffer_store_dwordx4 {vr(V_Q+ks*4,4)}, v{V_T0}, s[{S_O}:{S_O+3}], s{S_WAVE} offen offset:{ks*32}")
        E("  s_endpgm")
    E("L1_loop:")
    for u in range(4):
        slot = u
        hi = slot >= 2
        so = (slot & 1) * 32768
        E("  s_waitcnt vmcnt(16)")
        E("  s_barrier")
        dma_tile((slot+3) % 4)
        for kb in range(2):
            for ks in range(8):
                E(f"  ds_read_b128 {vr(V_KF+ks*4,4)}, v{V_KA+(8 if hi else 0)+ks} offset:{so + kb*8192}")
            for ks in range(8):
                E(f"  s_waitcnt lgkmcnt({7-ks})")
                if ks == 0:
                    E(f"  v_mfma_f32_32x32x16_bf16 {vr(V_S+kb*16,16)}, {vr(V_KF,4)}, {vr(V_Q,4)}, 0")
                else:
                    mfma(V_S+kb*16, V_KF+ks*4, V_Q+ks*4)
        E("  s_nop 7")
        E("  s_nop 7")
        E(f"  v_max3_f32 v{V_T0}, v{V_S}, v{V_S+1}, v{V_S+2}")
        E(f"  v_max3_f32 v{V_T1}, v{V_S+16}, v{V_S+17}, v{V_S+18}")
        for i in range(3, 15, 2):
            E(f"  v_max3_f32 v{V_T0}, v{V_T0}, v{V_S+i}, v{V_S+i+1}")
            E(f"  v_max3_f32 v{V_T1}, v{V_T1}, v{V_S+16+i}, v{V_S+16+i+1}")
        E(f"  v_max3_f32 v{V_T0}, v{V_T0}, v{V_S+15}, v{V_S+31}")
        E(f"  v_max_f32 v{V_T0}, v{V_T0}, v{V_T1}")
        E(f"  v_mov_b32 v{V_T1}, v{V_T0}")
        E("  s_nop 1")
        E(f"  v_permlane32_swap_b32 v{V_T0}, v{V_T1}")
        E(f"  v_max3_f32 v{V_T0}, v{V_T0}, v{V_T1}, v{V_M}")
        E(f"  v_sub_f32 v{V_T1}, v{V_M}, v{V_T0}")
        E(f"  v_mul_f32 v{V_T1}, s{S_C}, v{V_T1}")
        E(f"  v_exp_f32 v{V_AL}, v{V_T1}")
        E(f"  v_mov_b32 v{V_M}, v{V_T0}")
        E(f"  v_mul_f32 v{V_MC}, s{S_C}, v{V_T0}")
        for i in range(32):
            E(f"  v_fma_f32 v{V_S+i}, v{V_S+i}, s{S_C}, -v{V_MC}")
        for i in range(32):
            E(f"  v_exp_f32 v{V_S+i}, v{V_S+i}")
        E(f"  v_mul_f32 v{V_LS}, v{V_LS}, v{V_AL}")
        E(f"  v_mov_b32 v{V_T0}, 0")
        for i in range(0, 32, 2):
            E(f"  v_add_f32 v{V_LS}, v{V_LS}, v{V_S+i}")
            E(f"  v_add_f32 v{V_T0}, v{V_T0}, v{V_S+i+1}")
        E(f"  v_add_f32 v{V_LS}, v{V_LS}, v{V_T0}")
        for i in range(16):
            E(f"  v_cvt_pk_bf16_f32 v{V_P+i}, v{V_S+2*i}, v{V_S+2*i+1}")
        for i in range(64):
            E(f"  v_mul_f32 v{V_O+i}, v{V_O+i}, v{V_AL}")
        for half in range(2):
            for k2 in range(2):
                ks2 = half*2 + k2
                for db in range(4):
                    fr = V_VF + (k2*4+db)*4
                    for j in range(2):
                        E(f"  ds_read_b64_tr_b16 {vr(fr+j*2,2)}, v{V_VA+(4 if hi else 0)+db} offset:{so + 16384 + ks2*4096 + j*2048}")
            for k2 in range(2):
                ks2 = half*2 + k2
                for db in range(4):
                    fr = V_VF + (k2*4+db)*4
                    E(f"  s_waitcnt lgkmcnt({14 - 2*(k2*4+db)})")
                    mfma(V_O+db*16, fr, V_P+ks2*4)
    E("  s_add_u32 s3, s3, 1")
    E("  s_cmp_lt_u32 s3, 8")
    E("  s_cbranch_scc1 L1_loop")
    E(f"  v_mov_b32 v{V_T1}, v{V_LS}")
    E("  s_nop 1")
    E(f"  v_permlane32_swap_b32 v{V_LS}, v{V_T1}")
    E(f"  v_add_f32 v{V_LS}, v{V_LS}, v{V_T1}")
    E(f"  v_rcp_f32 v{V_AL}, v{V_LS}")
    E(f"  v_and_b32 v{V_T0}, 31, v{V_L}")
    E(f"  v_lshrrev_b32 v{V_T3}, 5, v{V_L}")
    E(f"  v_lshlrev_b32 v{V_T0}, 13, v{V_T0}")
    E(f"  v_lshl_add_u32 v{V_T0}, v{V_T3}, 4, v{V_T0}")
    E("  s_nop 7")
    for i in range(64):
        E(f"  v_mul_f32 v{V_O+i}, v{V_O+i}, v{V_AL}")
    for db in range(4):
        for kh in range(2):
            q = V_S + (db*2+kh)*4
            a = V_O + db*16 + kh*8
            for r in range(4):
                E(f"  v_cvt_pk_bf16_f32 v{q+r}, v{a+2*r}, v{a+2*r+1}")
            E("  s_nop 1")
            E(f"  v_permlane32_swap_b32 v{q}, v{q+2}")
            E(f"  v_permlane32_swap_b32 v{q+1}, v{q+3}")
            E(f"  buffer_store_dwordx4 {vr(q,4)}, v{V_T0}, s[{S_O}:{S_O+3}], s{S_WAVE} offen offset:{db*64+kh*32}")
    E("L1_done:")
    E("  s_endpgm")

def kernel2():
    VL, T0, T1, T2, T3 = 1, 2, 3, 4, 5
    V_OA = 6
    V_DW2 = 7
    V_AA = 8
    V_B = 16
    V_A = 144
    V_D = 176
    SO, SW, SOUT = 16, 20, 24
    E(".globl oproj_kernel")
    E(".p2align 8")
    E(".type oproj_kernel,@function")
    E("oproj_kernel:")
    E("  s_cmp_ge_u32 s2, 256")
    E("  s_cbranch_scc1 L2_done")
    E("  s_load_dwordx4 s[4:7], s[0:1], 32")
    E("  s_load_dwordx2 s[8:9], s[0:1], 56")
    E(f"  v_and_b32 v{VL}, 63, v0")
    E(f"  v_lshrrev_b32 v{T0}, 6, v0")
    E("  s_nop 0")
    E(f"  v_readfirstlane_b32 s36, v{T0}")
    E("  s_lshr_b32 s14, s2, 4")
    E("  s_and_b32 s15, s2, 15")
    E("  s_waitcnt lgkmcnt(0)")
    E("  s_lshl_b32 s3, s14, 19")
    E(f"  s_add_u32 s{SO}, s8, s3")
    E(f"  s_addc_u32 s{SO+1}, s9, 0")
    E(f"  s_mov_b32 s{SO+2}, 0x80000")
    E(f"  s_mov_b32 s{SO+3}, 0x20000")
    E("  s_lshl_b32 s3, s15, 6")
    E(f"  s_add_u32 s{SW}, s4, s3")
    E(f"  s_addc_u32 s{SW+1}, s5, 0")
    E(f"  s_sub_u32 s{SW+2}, 0x400000, s3")
    E(f"  s_mov_b32 s{SW+3}, 0x20000")
    E("  s_lshl_b32 s14, s14, 16")
    E("  s_add_u32 s14, s14, s3")
    E(f"  s_add_u32 s{SOUT}, s6, s14")
    E(f"  s_addc_u32 s{SOUT+1}, s7, 0")
    E(f"  s_sub_u32 s{SOUT+2}, 0x10000, s3")
    E(f"  s_mov_b32 s{SOUT+3}, 0x20000")
    E(f"  v_and_b32 v{T0}, 31, v{VL}")
    E(f"  v_lshrrev_b32 v{T3}, 5, v{VL}")
    E(f"  v_lshlrev_b32 v{T0}, 13, v{T0}")
    E(f"  v_lshl_add_u32 v{V_OA}, v{T3}, 4, v{T0}")
    E(f"  v_lshrrev_b32 v{T0}, 2, v{VL}")
    E(f"  v_and_b32 v{T1}, 3, v{VL}")
    E(f"  v_lshlrev_b32 v{T1}, 4, v{T1}")
    E(f"  v_lshl_add_u32 v{V_DW2}, v{T0}, 10, v{T1}")
    E(f"  v_lshrrev_b32 v{T0}, 2, v{VL}")
    E(f"  v_and_b32 v{T0}, 3, v{T0}")
    E(f"  v_and_b32 v{T1}, 3, v{VL}")
    E(f"  v_lshlrev_b32 v{T1}, 3, v{T1}")
    E(f"  v_bfe_u32 v{T2}, v{VL}, 4, 1")
    E(f"  v_lshl_add_u32 v{T1}, v{T2}, 5, v{T1}")
    E(f"  v_lshl_add_u32 v{T1}, v{T0}, 6, v{T1}")
    E(f"  v_lshl_add_u32 v{T1}, v{T3}, 9, v{T1}")
    E("  s_lshl_b32 s37, s36, 14")
    E(f"  v_add_u32 v{V_AA}, s37, v{T1}")
    E("  s_lshl_b32 s38, s36, 11")
    E("  s_lshl_b32 s39, s36, 20")
    for i in range(32):
        E(f"  v_mov_b32 v{V_D+i}, 0")
    def loads(ch, st):
        for jj in range(8):
            E(f"  s_add_u32 m0, s37, {st*8192 + jj*1024}")
            E(f"  s_add_u32 s40, s39, {(ch*128 + jj*16)*1024}")
            E(f"  buffer_load_dwordx4 v{V_DW2}, s[{SW}:{SW+3}], s40 offen lds")
        for kk in range(8):
            for mh in range(2):
                E(f"  buffer_load_dwordx4 {vr(V_B+st*64+(kk*2+mh)*4,4)}, v{V_OA}, s[{SO}:{SO+3}], s41 offen offset:{ch*256 + kk*32}" if mh == 0 else
                  f"  buffer_load_dwordx4 {vr(V_B+st*64+(kk*2+mh)*4,4)}, v{V_OA}, s[{SO}:{SO+3}], s42 offen offset:{ch*256 + kk*32}")
    E("  s_mov_b32 s41, s38")
    E("  s_add_u32 s42, s38, 0x40000")
    loads(0, 0)
    for ch in range(8):
        st = ch & 1
        if ch < 7:
            loads(ch+1, st ^ 1)
            E("  s_waitcnt vmcnt(24)")
        else:
            E("  s_waitcnt vmcnt(0)")
        for kk in range(8):
            for j in range(2):
                E(f"  ds_read_b64_tr_b16 {vr(V_A+kk*4+j*2,2)}, v{V_AA} offset:{st*8192 + kk*1024 + j*256}")
        for kk in range(8):
            E(f"  s_waitcnt lgkmcnt({14-2*kk})")
            for mh in range(2):
                mfma(V_D+mh*16, V_A+kk*4, V_B+st*64+(kk*2+mh)*4)
    E("  s_nop 7")
    E("  s_nop 7")
    E("  s_barrier")
    E(f"  v_lshlrev_b32 v{T0}, 2, v{VL}")
    E("  s_lshl_b32 s37, s36, 13")
    E(f"  v_add_u32 v{T1}, s37, v{T0}")
    for i in range(32):
        E(f"  ds_write_b32 v{T1}, v{V_D+i} offset:{i*256}")
    E("  s_waitcnt lgkmcnt(0)")
    E("  s_barrier")
    E("  s_lshl_b32 s37, s36, 11")
    E(f"  v_add_u32 v{T1}, s37, v{T0}")
    for w in range(4):
        for i in range(8):
            E(f"  ds_read_b32 v{V_B+w*8+i}, v{T1} offset:{w*8192 + i*256}")
    E("  s_waitcnt lgkmcnt(0)")
    for i in range(8):
        E(f"  v_add_f32 v{V_B+i}, v{V_B+i}, v{V_B+8+i}")
        E(f"  v_add_f32 v{V_B+16+i}, v{V_B+16+i}, v{V_B+24+i}")
    for i in range(8):
        E(f"  v_add_f32 v{V_B+i}, v{V_B+i}, v{V_B+16+i}")
    for r in range(4):
        E(f"  v_cvt_pk_bf16_f32 v{V_A+r}, v{V_B+2*r}, v{V_B+2*r+1}")
    E("  s_nop 1")
    E(f"  v_permlane32_swap_b32 v{V_A}, v{V_A+2}")
    E(f"  v_permlane32_swap_b32 v{V_A+1}, v{V_A+3}")
    E(f"  v_and_b32 v{T0}, 31, v{VL}")
    E(f"  v_lshrrev_b32 v{T3}, 5, v{VL}")
    E(f"  v_lshlrev_b32 v{T0}, 10, v{T0}")
    E(f"  v_lshl_add_u32 v{T0}, v{T3}, 4, v{T0}")
    E("  s_lshr_b32 s37, s36, 1")
    E("  s_lshl_b32 s37, s37, 15")
    E("  s_and_b32 s38, s36, 1")
    E("  s_lshl_b32 s38, s38, 5")
    E("  s_add_u32 s37, s37, s38")
    E(f"  buffer_store_dwordx4 {vr(V_A,4)}, v{T0}, s[{SOUT}:{SOUT+3}], s37 offen")
    E("L2_done:")
    E("  s_endpgm")

def kd(name, nv):
    E(f".amdhsa_kernel {name}")
    E(f"  .amdhsa_next_free_vgpr {nv}")
    E("  .amdhsa_next_free_sgpr 64")
    E(f"  .amdhsa_accum_offset {(nv+3)//4*4}")
    E("  .amdhsa_group_segment_fixed_size 0")
    E("  .amdhsa_kernarg_size 64")
    E("  .amdhsa_user_sgpr_count 2")
    E("  .amdhsa_user_sgpr_kernarg_segment_ptr 1")
    E("  .amdhsa_system_sgpr_workgroup_id_x 1")
    E(".end_amdhsa_kernel")

E(HDR)
kernel1()
kernel2()
E('.section .rodata,"a"')
E(".p2align 6")
kd("standalone__gqa_block_cached__near_ridge_kernel", NV1)
E(".p2align 6")
kd("oproj_kernel", 208)
open(sys.argv[1], "w").write("\n".join(out) + "\n")
```

```python
import sys
DBGQ = len(sys.argv) > 2

out = []
def E(s=""):
    out.append(s)

def vr(base, n=1):
    return f"v{base}" if n == 1 else f"v[{base}:{base+n-1}]"

HDR = """; Kernarg layout for this problem (64 bytes, ptrs only, base s[0:1]):
; @launch kernel=standalone__gqa_block_cached__near_ridge_kernel grid=(256,1,1) block=(512,1,1) lds=163840
; @launch kernel=oproj_kernel grid=(256,1,1) block=(256,1,1) lds=147456
.amdgcn_target "amdgcn-amd-amdhsa--gfx950"
.text
"""

V_L = 1
V_T0, V_T1, V_T2, V_T3 = 2, 3, 4, 5
V_M, V_LS, V_AL, V_MC = 6, 7, 8, 9
V_DK = 10
V_DV = 12
V_DW = 13
V_KB = 14
V_VB = 16
V_KA = 20
V_VA = 28
V_Q = 32
V_S = 64
V_P = 96
V_O = 112
V_KF = 176
V_VF = 208
NV1 = 240
V_X = 32
V_WA = 160
V_ACC = 176
V_WADDR = 20
V_XD = 24
V_XA = 32
V_XF = 40

S_K, S_V, S_X, S_W, S_O = 16, 20, 24, 28, 32
S_WAVE = 36
S_C = 37
S_T = 38
S_T2 = 39
S_TILE = 40
S_W2 = 41
S_GRP = 43
S_QW = 44
S_PSLOT = 45
S_CSLOT = 46
S_ROW = 47

def mfma(d, a, b, c=None):
    c = d if c is None else c
    E(f"  v_mfma_f32_32x32x16_bf16 {vr(d,16)}, {vr(a,4)}, {vr(b,4)}, {vr(c,16)}")

def dma_tile():
    E(f"  s_add_u32 m0, s{S_PSLOT}, s{S_W2}")
    E(f"  s_add_u32 s{S_T}, s{S_PSLOT}, 32768")
    for jj in range(2):
        E(f"  buffer_load_dwordx4 v{V_DK+jj}, s[{S_K}:{S_K+3}], s{S_TILE} offen offset:{jj*1024} nt lds")
    E(f"  s_add_u32 m0, m0, 16384")
    E(f"  s_cmp_ge_u32 s{S_T}, 163840")
    for jj in range(2):
        E(f"  buffer_load_dwordx4 v{V_DV}, s[{S_V}:{S_V+3}], s{S_TILE} offen offset:{jj*1024} nt lds")
    E(f"  s_cselect_b32 s{S_PSLOT}, 0, s{S_T}")
    E(f"  s_add_u32 s{S_TILE}, s{S_TILE}, 16384")

def dma_wq(chunk, buf):
    for jj in range(4):
        E(f"  s_add_u32 m0, s{S_T2}, {buf + jj*1024}")
        E(f"  s_add_u32 s{S_T}, s42, {(chunk*128 + jj*4)*8192}")
        E(f"  buffer_load_dwordx4 v{V_DW}, s[{S_W}:{S_W+3}], s{S_T} offen lds")

def qproj_chunk(chunk, buf):
    for kk in range(8):
        for db in range(2):
            for j in range(2):
                E(f"  ds_read_b64_tr_b16 {vr(V_WA+(kk&1)*8+db*4+j*2,2)}, v{V_WADDR+db} offset:{buf - 3*32768 + kk*4096 + j*1024}")
        for db in range(2):
            E(f"  s_waitcnt lgkmcnt({2-2*db})")
            mfma(V_ACC+db*16, V_WA+(kk&1)*8+db*4, V_X+(chunk*8+kk)*4)

def kernel1():
    E(".globl standalone__gqa_block_cached__near_ridge_kernel")
    E(".p2align 8")
    E(".type standalone__gqa_block_cached__near_ridge_kernel,@function")
    E("standalone__gqa_block_cached__near_ridge_kernel:")
    E("  s_cmp_ge_u32 s2, 256")
    E("  s_cbranch_scc1 L1_done")
    E("  s_load_dwordx4 s[4:7], s[0:1], 0")
    E("  s_load_dwordx4 s[8:11], s[0:1], 16")
    E("  s_load_dwordx2 s[12:13], s[0:1], 56")
    E(f"  v_and_b32 v{V_L}, 63, v0")
    E(f"  v_lshrrev_b32 v{V_T0}, 6, v0")
    E("  s_nop 0")
    E(f"  v_readfirstlane_b32 s{S_WAVE}, v{V_T0}")
    E("  s_waitcnt lgkmcnt(0)")
    E("  s_lshl_b32 s3, s2, 19")
    E(f"  s_add_u32 s{S_K}, s6, s3")
    E(f"  s_addc_u32 s{S_K+1}, s7, 0")
    E(f"  s_mov_b32 s{S_K+2}, 524288")
    E(f"  s_mov_b32 s{S_K+3}, 0x20000")
    E(f"  s_add_u32 s{S_V}, s8, s3")
    E(f"  s_addc_u32 s{S_V+1}, s9, 0")
    E(f"  s_mov_b32 s{S_V+2}, 524288")
    E(f"  s_mov_b32 s{S_V+3}, 0x20000")
    E("  s_lshr_b32 s14, s2, 5")
    E("  s_and_b32 s15, s2, 31")
    E("  s_lshl_b32 s3, s14, 17")
    E(f"  s_add_u32 s{S_X}, s4, s3")
    E(f"  s_addc_u32 s{S_X+1}, s5, 0")
    E(f"  s_mov_b32 s{S_X+2}, 131072")
    E(f"  s_mov_b32 s{S_X+3}, 0x20000")
    E("  s_lshl_b32 s3, s15, 8")
    E(f"  s_add_u32 s{S_W}, s10, s3")
    E(f"  s_addc_u32 s{S_W+1}, s11, 0")
    E(f"  s_sub_u32 s{S_W+2}, 0x400000, s3")
    E(f"  s_mov_b32 s{S_W+3}, 0x20000")
    E("  s_lshl_b32 s14, s14, 20")
    E("  s_add_u32 s14, s14, s3")
    E(f"  s_add_u32 s{S_O}, s12, s14")
    E(f"  s_addc_u32 s{S_O+1}, s13, 0")
    E(f"  s_sub_u32 s{S_O+2}, 0x100000, s3")
    E(f"  s_mov_b32 s{S_O+3}, 0x20000")
    E(f"  s_mov_b32 s{S_C}, 0x3e0293ee")
    E(f"  s_lshr_b32 s{S_GRP}, s{S_WAVE}, 2")
    E(f"  s_and_b32 s{S_QW}, s{S_WAVE}, 3")
    E(f"  s_lshl_b32 s{S_W2}, s{S_WAVE}, 11")
    E(f"  s_mov_b32 s{S_TILE}, s{S_W2}")
    E(f"  s_mov_b32 s{S_PSLOT}, 0")
    E(f"  s_lshl_b32 s{S_T2}, s{S_WAVE}, 12")
    E(f"  s_lshl_b32 s42, s{S_WAVE}, 17")
    E(f"  s_lshl_b32 s{S_ROW}, s{S_QW}, 18")
    E(f"  s_and_b32 s3, s{S_WAVE}, 1")
    E(f"  s_lshl_b32 s3, s3, 7")
    l = V_L
    E(f"  v_and_b32 v{V_T0}, 15, v{l}")
    E(f"  v_lshrrev_b32 v{V_T1}, 4, v{l}")
    E(f"  v_xor_b32 v{V_T2}, v{V_T0}, v{V_T1}")
    E(f"  v_lshlrev_b32 v{V_T2}, 4, v{V_T2}")
    E(f"  v_lshl_add_u32 v{V_T2}, v{V_T1}, 8, v{V_T2}")
    E(f"  v_xor_b32 v{V_DK}, s3, v{V_T2}")
    E(f"  v_xor_b32 v{V_DK+1}, 64, v{V_DK}")
    E(f"  v_lshlrev_b32 v{V_T2}, 2, v{V_T1}")
    E(f"  v_xor_b32 v{V_T2}, v{V_T2}, v{V_T0}")
    E(f"  v_lshlrev_b32 v{V_T2}, 4, v{V_T2}")
    E(f"  v_lshl_add_u32 v{V_DV}, v{V_T1}, 8, v{V_T2}")
    E(f"  v_lshl_add_u32 v{V_DW}, v{V_T1}, 13, v{V_T2}")
    E(f"  v_and_b32 v{V_T2}, 31, v{l}")
    E(f"  v_lshrrev_b32 v{V_T3}, 5, v{l}")
    E(f"  v_lshlrev_b32 v{V_T2}, 10, v{V_T2}")
    E(f"  v_lshl_add_u32 v{V_T2}, v{V_T3}, 4, v{V_T2}")
    E(f"  s_lshl_b32 s3, s{S_QW}, 15")
    E(f"  v_and_b32 v{V_T0}, 15, v{l}")
    E(f"  v_lshrrev_b32 v{V_T1}, 4, v{l}")
    E(f"  v_xor_b32 v{V_T2}, v{V_T0}, v{V_T1}")
    E(f"  v_lshlrev_b32 v{V_T2}, 4, v{V_T2}")
    E(f"  v_lshl_add_u32 v{V_T2}, v{V_T1}, 10, v{V_T2}")
    for jj in range(4):
        E(f"  v_xor_b32 v{V_XD+jj}, {jj*64}, v{V_T2}")
    E(f"  s_lshl_b32 s48, s{S_WAVE}, 14")
    def ld_chunk(c, s0):
        dma_wq(c, s0*32768)
        for jj in range(4):
            E(f"  s_add_u32 m0, s{S_T2}, {(s0+1)*32768 + jj*1024}")
            E(f"  s_add_u32 s{S_T}, s48, {jj*4096 + c*256}")
            E(f"  buffer_load_dwordx4 v{V_XD+jj}, s[{S_X}:{S_X+3}], s{S_T} offen lds")
    ld_chunk(0, 1)
    ld_chunk(1, 3)
    dma_tile()
    E(f"  v_lshrrev_b32 v{V_T0}, 2, v{l}")
    E(f"  v_and_b32 v{V_T0}, 3, v{V_T0}")
    E(f"  v_and_b32 v{V_T1}, 3, v{l}")
    E(f"  v_lshlrev_b32 v{V_T1}, 3, v{V_T1}")
    E(f"  v_bfe_u32 v{V_T2}, v{l}, 4, 1")
    E(f"  v_lshl_add_u32 v{V_T1}, v{V_T2}, 5, v{V_T1}")
    E(f"  v_lshl_add_u32 v{V_T1}, v{V_T0}, 8, v{V_T1}")
    E(f"  s_lshl_b32 s3, s{S_GRP}, 1")
    for db in range(2):
        E(f"  v_xor_b32 v{V_T2}, s3, v{V_T0}")
        E(f"  v_xor_b32 v{V_T2}, {db}, v{V_T2}")
        E(f"  v_lshl_add_u32 v{V_T2}, v{V_T2}, 6, v{V_T1}")
        E(f"  v_lshl_add_u32 v{V_WADDR+db}, v{V_T3}, 11, v{V_T2}")
        E(f"  v_add_u32 v{V_WADDR+db}, 0x8000, v{V_WADDR+db}")
        E(f"  v_add_u32 v{V_WADDR+2+db}, 0x10000, v{V_WADDR+db}")
    E(f"  v_and_b32 v{V_T2}, 15, v{l}")
    E(f"  v_xor_b32 v{V_T2}, v{V_T2}, v{V_T3}")
    E(f"  v_lshlrev_b32 v{V_T2}, 4, v{V_T2}")
    E(f"  v_and_b32 v{V_KB}, 31, v{l}")
    E(f"  v_lshl_add_u32 v{V_KB}, v{V_KB}, 8, v{V_T2}")
    E(f"  s_lshl_b32 s3, s{S_QW}, 13")
    E(f"  s_add_u32 s3, s3, 0x10000")
    for kk in range(8):
        E(f"  v_xor_b32 v{V_XA+kk}, {kk*32}, v{V_KB}")
        E(f"  v_add_u32 v{V_XA+kk}, s3, v{V_XA+kk}")
    for i in range(32):
        E(f"  v_mov_b32 v{V_ACC+i}, 0")
    def qc(half):
        for kk in range(8):
            E(f"  ds_read_b128 {vr(V_XF+(kk&1)*4,4)}, v{V_XA+kk}")
            for db in range(2):
                for j in range(2):
                    E(f"  ds_read_b64_tr_b16 {vr(V_WA+(kk&1)*8+db*4+j*2,2)}, v{V_WADDR+2*half+db} offset:{kk*4096 + j*1024}")
            for db in range(2):
                E(f"  s_waitcnt lgkmcnt({2-2*db})")
                mfma(V_ACC+db*16, V_WA+(kk&1)*8+db*4, V_XF+(kk&1)*4)
        for kk in range(8):
            E(f"  v_xor_b32 v{V_XA+kk}, 0x30000, v{V_XA+kk}")
    E("  s_waitcnt vmcnt(12)")
    E("  s_barrier")
    qc(0)
    E("  s_barrier")
    ld_chunk(2, 1)
    E("  s_waitcnt vmcnt(12)")
    E("  s_barrier")
    qc(1)
    E("  s_barrier")
    ld_chunk(3, 3)
    E("  s_waitcnt vmcnt(8)")
    E("  s_barrier")
    qc(0)
    E("  s_barrier")
    dma_tile()
    dma_tile()
    E("  s_waitcnt vmcnt(8)")
    E("  s_barrier")
    qc(1)
    BUFB = 4*32768
    for db in range(4):
        E(f"  v_xor_b32 v{V_T2}, {db}, v{V_T0}")
        E(f"  v_lshl_add_u32 v{V_T2}, v{V_T2}, 6, v{V_T1}")
        E(f"  v_lshl_add_u32 v{V_VB+db}, v{V_T3}, 10, v{V_T2}")
        E(f"  v_add_u32 v{V_VB+db}, 16384, v{V_VB+db}")
    E(f"  v_and_b32 v{V_T0}, 15, v{l}")
    E(f"  v_xor_b32 v{V_T0}, v{V_T0}, v{V_T3}")
    E(f"  v_lshlrev_b32 v{V_T0}, 4, v{V_T0}")
    E(f"  v_and_b32 v{V_T1}, 31, v{l}")
    E(f"  v_lshl_add_u32 v{V_KB}, v{V_T1}, 8, v{V_T0}")
    E("  s_nop 7")
    E("  s_nop 7")
    for db in range(2):
        for kh in range(2):
            q = V_S + (db*2+kh)*4
            a = V_ACC + db*16 + kh*8
            for r in range(4):
                E(f"  v_cvt_pk_bf16_f32 v{q+r}, v{a+2*r}, v{a+2*r+1}")
            E("  s_nop 1")
            E(f"  v_permlane32_swap_b32 v{q}, v{q+2}")
            E(f"  v_permlane32_swap_b32 v{q+1}, v{q+3}")
    E(f"  v_lshlrev_b32 v{V_T0}, 4, v{l}")
    E(f"  s_lshl_b32 s3, s{S_QW}, 13")
    E(f"  s_add_u32 s3, s3, {BUFB}")
    E(f"  v_add_u32 v{V_T0}, s3, v{V_T0}")
    E(f"  s_lshl_b32 s3, s{S_GRP}, 12")
    E(f"  v_add_u32 v{V_T1}, s3, v{V_T0}")
    E("  s_barrier")
    for f in range(4):
        E(f"  ds_write_b128 v{V_T1}, {vr(V_S+f*4,4)} offset:{f*1024}")
    E("  s_waitcnt lgkmcnt(0)")
    E("  s_barrier")
    for f in range(8):
        E(f"  ds_read_b128 {vr(V_Q+f*4,4)}, v{V_T0} offset:{f*1024}")
    for i in range(64):
        E(f"  v_mov_b32 v{V_O+i}, 0")
    E(f"  v_mov_b32 v{V_M}, 0xff800000")
    E(f"  v_mov_b32 v{V_LS}, 0")
    E("  s_mov_b32 s3, 0")
    E(f"  s_lshl_b32 s{S_CSLOT}, s{S_GRP}, 15")
    E("  s_waitcnt lgkmcnt(0)")
    E(f"  s_cmp_eq_u32 s{S_GRP}, 0")
    E("  s_cbranch_scc1 L1_loop")
    E("  s_barrier")
    dma_tile()
    E("L1_loop:")
    for ks in range(8):
        E(f"  v_xor_b32 v{V_KA+ks}, {ks*32}, v{V_KB}")
        E(f"  v_add_u32 v{V_KA+ks}, s{S_CSLOT}, v{V_KA+ks}")
    for db in range(4):
        E(f"  v_add_u32 v{V_VA+db}, s{S_CSLOT}, v{V_VB+db}")
    E(f"  s_add_u32 s{S_CSLOT}, s{S_CSLOT}, 65536")
    E(f"  s_sub_u32 s{S_T}, s{S_CSLOT}, 163840")
    E(f"  s_cmp_ge_u32 s{S_CSLOT}, 163840")
    E(f"  s_cselect_b32 s{S_CSLOT}, s{S_T}, s{S_CSLOT}")
    E("  s_waitcnt vmcnt(8)")
    E("  s_barrier")
    dma_tile()
    for kb in range(2):
        for ks in range(8):
            E(f"  ds_read_b128 {vr(V_KF+ks*4,4)}, v{V_KA+ks} offset:{kb*8192}")
        for ks in range(8):
            E(f"  s_waitcnt lgkmcnt({7-ks})")
            if ks == 0:
                E(f"  v_mfma_f32_32x32x16_bf16 {vr(V_S+kb*16,16)}, {vr(V_KF,4)}, {vr(V_Q,4)}, 0")
            else:
                mfma(V_S+kb*16, V_KF+ks*4, V_Q+ks*4)
    E("  s_nop 7")
    E("  s_nop 7")
    E(f"  v_max3_f32 v{V_T0}, v{V_S}, v{V_S+1}, v{V_S+2}")
    E(f"  v_max3_f32 v{V_T1}, v{V_S+16}, v{V_S+17}, v{V_S+18}")
    for i in range(3, 15, 2):
        E(f"  v_max3_f32 v{V_T0}, v{V_T0}, v{V_S+i}, v{V_S+i+1}")
        E(f"  v_max3_f32 v{V_T1}, v{V_T1}, v{V_S+16+i}, v{V_S+16+i+1}")
    E(f"  v_max3_f32 v{V_T0}, v{V_T0}, v{V_S+15}, v{V_S+31}")
    E(f"  v_max_f32 v{V_T0}, v{V_T0}, v{V_T1}")
    E(f"  v_mov_b32 v{V_T1}, v{V_T0}")
    E("  s_nop 1")
    E(f"  v_permlane32_swap_b32 v{V_T0}, v{V_T1}")
    E(f"  v_max3_f32 v{V_T0}, v{V_T0}, v{V_T1}, v{V_M}")
    E(f"  v_sub_f32 v{V_T1}, v{V_M}, v{V_T0}")
    E(f"  v_mul_f32 v{V_T1}, s{S_C}, v{V_T1}")
    E(f"  v_exp_f32 v{V_AL}, v{V_T1}")
    E(f"  v_mov_b32 v{V_M}, v{V_T0}")
    E(f"  v_mul_f32 v{V_MC}, s{S_C}, v{V_T0}")
    for i in range(32):
        E(f"  v_fma_f32 v{V_S+i}, v{V_S+i}, s{S_C}, -v{V_MC}")
    for i in range(32):
        E(f"  v_exp_f32 v{V_S+i}, v{V_S+i}")
    E(f"  v_mul_f32 v{V_LS}, v{V_LS}, v{V_AL}")
    E(f"  v_mov_b32 v{V_T0}, 0")
    for i in range(0, 32, 2):
        E(f"  v_add_f32 v{V_LS}, v{V_LS}, v{V_S+i}")
        E(f"  v_add_f32 v{V_T0}, v{V_T0}, v{V_S+i+1}")
    E(f"  v_add_f32 v{V_LS}, v{V_LS}, v{V_T0}")
    for i in range(16):
        E(f"  v_cvt_pk_bf16_f32 v{V_P+i}, v{V_S+2*i}, v{V_S+2*i+1}")
    E("  s_waitcnt vmcnt(8)")
    E("  s_barrier")
    dma_tile()
    for half in range(2):
        for k2 in range(2):
            ks2 = half*2 + k2
            for db in range(4):
                fr = V_VF + (k2*4+db)*4
                for j in range(2):
                    E(f"  ds_read_b64_tr_b16 {vr(fr+j*2,2)}, v{V_VA+db} offset:{ks2*4096 + j*2048}")
        if half == 0:
            for i in range(64):
                E(f"  v_mul_f32 v{V_O+i}, v{V_O+i}, v{V_AL}")
        for k2 in range(2):
            ks2 = half*2 + k2
            for db in range(4):
                fr = V_VF + (k2*4+db)*4
                E(f"  s_waitcnt lgkmcnt({14 - 2*(k2*4+db)})")
                mfma(V_O+db*16, fr, V_P+ks2*4)
    E("  s_add_u32 s3, s3, 1")
    E("  s_cmp_lt_u32 s3, 16")
    E("  s_cbranch_scc1 L1_loop")
    E(f"  v_mov_b32 v{V_T1}, v{V_LS}")
    E("  s_nop 1")
    E(f"  v_permlane32_swap_b32 v{V_LS}, v{V_T1}")
    E(f"  v_add_f32 v{V_LS}, v{V_LS}, v{V_T1}")
    E(f"  v_lshlrev_b32 v{V_T0}, 4, v{V_L}")
    E(f"  s_mul_i32 s3, s{S_QW}, 17408")
    E(f"  v_add_u32 v{V_T0}, s3, v{V_T0}")
    E(f"  s_cmp_eq_u32 s{S_GRP}, 0")
    E("  s_cbranch_scc1 L1_ga")
    E("  s_nop 7")
    E("  s_nop 7")
    E("  s_waitcnt vmcnt(0)")
    E("  s_barrier")
    for qd in range(16):
        E(f"  ds_write_b128 v{V_T0}, {vr(V_O+qd*4,4)} offset:{qd*1024}")
    E(f"  ds_write_b64 v{V_T0}, {vr(V_M,2)} offset:16384")
    E("  s_waitcnt lgkmcnt(0)")
    E("  s_barrier")
    E("  s_endpgm")
    E("L1_ga:")
    E("  s_waitcnt vmcnt(0)")
    E("  s_barrier")
    E("  s_barrier")
    E("  s_barrier")
    E(f"  ds_read_b64 {vr(V_T2,2)}, v{V_T0} offset:16384")
    for qd in range(16):
        E(f"  ds_read_b128 {vr(V_Q+qd*4,4)}, v{V_T0} offset:{qd*1024}")
    E("  s_waitcnt lgkmcnt(15)")
    E(f"  v_max_f32 v{V_T1}, v{V_M}, v{V_T2}")
    E(f"  v_sub_f32 v{V_M}, v{V_M}, v{V_T1}")
    E(f"  v_sub_f32 v{V_T2}, v{V_T2}, v{V_T1}")
    E(f"  v_mul_f32 v{V_M}, s{S_C}, v{V_M}")
    E(f"  v_mul_f32 v{V_T2}, s{S_C}, v{V_T2}")
    E(f"  v_exp_f32 v{V_M}, v{V_M}")
    E(f"  v_exp_f32 v{V_T2}, v{V_T2}")
    E("  s_nop 0")
    E(f"  v_mul_f32 v{V_LS}, v{V_LS}, v{V_M}")
    E(f"  v_fma_f32 v{V_LS}, v{V_T3}, v{V_T2}, v{V_LS}")
    E(f"  v_rcp_f32 v{V_AL}, v{V_LS}")
    E("  s_nop 0")
    E(f"  v_mul_f32 v{V_M}, v{V_M}, v{V_AL}")
    E(f"  v_mul_f32 v{V_T2}, v{V_T2}, v{V_AL}")
    E(f"  v_and_b32 v{V_T0}, 31, v{V_L}")
    E(f"  v_lshrrev_b32 v{V_T3}, 5, v{V_L}")
    E(f"  v_lshlrev_b32 v{V_T0}, 13, v{V_T0}")
    E(f"  v_lshl_add_u32 v{V_T0}, v{V_T3}, 4, v{V_T0}")
    E("  s_waitcnt lgkmcnt(0)")
    for i in range(64):
        E(f"  v_mul_f32 v{V_O+i}, v{V_O+i}, v{V_M}")
        E(f"  v_fma_f32 v{V_O+i}, v{V_Q+i}, v{V_T2}, v{V_O+i}")
    for db in range(4):
        for kh in range(2):
            q = V_KF + (db*2+kh)*4
            a = V_O + db*16 + kh*8
            for r in range(4):
                E(f"  v_cvt_pk_bf16_f32 v{q+r}, v{a+2*r}, v{a+2*r+1}")
            E("  s_nop 1")
            E(f"  v_permlane32_swap_b32 v{q}, v{q+2}")
            E(f"  v_permlane32_swap_b32 v{q+1}, v{q+3}")
            E(f"  buffer_store_dwordx4 {vr(q,4)}, v{V_T0}, s[{S_O}:{S_O+3}], s{S_ROW} offen offset:{db*64+kh*32}")
    E("L1_done:")
    E("  s_endpgm")

def kernel2():
    VL, T0, T1, T2, T3 = 1, 2, 3, 4, 5
    V_OA = 6
    V_DW2 = 7
    V_AA = 8
    V_B = 16
    V_A = 144
    V_D = 176
    SO, SW, SOUT = 16, 20, 24
    E(".globl oproj_kernel")
    E(".p2align 8")
    E(".type oproj_kernel,@function")
    E("oproj_kernel:")
    E("  s_cmp_ge_u32 s2, 256")
    E("  s_cbranch_scc1 L2_done")
    E("  s_load_dwordx4 s[4:7], s[0:1], 32")
    E("  s_load_dwordx2 s[8:9], s[0:1], 56")
    E(f"  v_and_b32 v{VL}, 63, v0")
    E(f"  v_lshrrev_b32 v{T0}, 6, v0")
    E("  s_nop 0")
    E(f"  v_readfirstlane_b32 s36, v{T0}")
    E("  s_bfe_u32 s14, s2, 0x20001")
    E("  s_lshl_b32 s14, s14, 2")
    E("  s_bfe_u32 s15, s2, 0x20006")
    E("  s_add_u32 s14, s14, s15")
    E("  s_and_b32 s15, s2, 1")
    E("  s_lshl_b32 s15, s15, 3")
    E("  s_bfe_u32 s3, s2, 0x30003")
    E("  s_add_u32 s15, s15, s3")
    E("  s_waitcnt lgkmcnt(0)")
    E("  s_lshl_b32 s3, s14, 19")
    E(f"  s_add_u32 s{SO}, s8, s3")
    E(f"  s_addc_u32 s{SO+1}, s9, 0")
    E(f"  s_mov_b32 s{SO+2}, 0x80000")
    E(f"  s_mov_b32 s{SO+3}, 0x20000")
    E("  s_lshl_b32 s3, s15, 6")
    E(f"  s_add_u32 s{SW}, s4, s3")
    E(f"  s_addc_u32 s{SW+1}, s5, 0")
    E(f"  s_sub_u32 s{SW+2}, 0x400000, s3")
    E(f"  s_mov_b32 s{SW+3}, 0x20000")
    E("  s_lshl_b32 s14, s14, 16")
    E("  s_add_u32 s14, s14, s3")
    E(f"  s_add_u32 s{SOUT}, s6, s14")
    E(f"  s_addc_u32 s{SOUT+1}, s7, 0")
    E(f"  s_sub_u32 s{SOUT+2}, 0x10000, s3")
    E(f"  s_mov_b32 s{SOUT+3}, 0x20000")
    V_OD = 8
    V_BA = 16
    V_AA2 = 20
    V_BB = 21
    V_AB = 22
    V_Bf = 24
    V_Af = 56
    E(f"  v_lshrrev_b32 v{T3}, 5, v{VL}")
    E(f"  v_and_b32 v{T0}, 31, v{VL}")
    E(f"  v_xor_b32 v{T1}, v{T0}, v{T3}")
    E(f"  v_lshlrev_b32 v{T1}, 4, v{T1}")
    E(f"  v_lshl_add_u32 v{T1}, v{T3}, 13, v{T1}")
    for jj in range(8):
        E(f"  v_xor_b32 v{V_OD+jj}, {jj*32}, v{T1}")
    E(f"  v_lshrrev_b32 v{T0}, 2, v{VL}")
    E(f"  v_and_b32 v{T1}, 3, v{VL}")
    E(f"  v_lshlrev_b32 v{T1}, 4, v{T1}")
    E(f"  v_lshl_add_u32 v{V_DW2}, v{T0}, 10, v{T1}")
    E(f"  v_lshrrev_b32 v{T0}, 2, v{VL}")
    E(f"  v_and_b32 v{T0}, 3, v{T0}")
    E(f"  v_and_b32 v{T1}, 3, v{VL}")
    E(f"  v_lshlrev_b32 v{T1}, 3, v{T1}")
    E(f"  v_bfe_u32 v{T2}, v{VL}, 4, 1")
    E(f"  v_lshl_add_u32 v{T1}, v{T2}, 5, v{T1}")
    E(f"  v_lshl_add_u32 v{T1}, v{T0}, 6, v{T1}")
    E(f"  v_lshl_add_u32 v{T1}, v{T3}, 9, v{T1}")
    E("  s_lshl_b32 s37, s36, 12")
    E("  s_add_u32 s37, s37, 32768")
    E(f"  v_add_u32 v{V_AB}, s37, v{T1}")
    E("  s_lshl_b32 s37, s36, 3")
    E(f"  v_and_b32 v{T0}, 15, v{VL}")
    E(f"  v_xor_b32 v{T0}, v{T0}, v{T3}")
    E(f"  v_xor_b32 v{T0}, s37, v{T0}")
    E(f"  v_lshlrev_b32 v{T0}, 4, v{T0}")
    E(f"  v_and_b32 v{T1}, 31, v{VL}")
    E(f"  v_lshl_add_u32 v{V_BB}, v{T1}, 9, v{T0}")
    E("  s_lshl_b32 s38, s36, 17")
    E("  s_lshl_b32 s39, s36, 16")
    E("  s_lshl_b32 s41, s36, 13")
    E("  s_lshl_b32 s42, s36, 12")
    E("  s_add_u32 s42, s42, 32768")
    E("  s_mov_b32 s43, 0")
    E("  s_mov_b32 s44, 0")
    for i in range(32):
        E(f"  v_mov_b32 v{V_D+i}, 0")
    def loads():
        E("  s_add_u32 s45, s41, s43")
        for jj in range(8):
            E(f"  s_add_u32 m0, s45, {jj*1024}")
            E(f"  s_add_u32 s40, s38, {jj*16384}")
            E(f"  buffer_load_dwordx4 v{V_OD+jj}, s[{SO}:{SO+3}], s40 offen lds")
        E("  s_add_u32 s45, s42, s43")
        for jj in range(4):
            E(f"  s_add_u32 m0, s45, {jj*1024}")
            E(f"  s_add_u32 s40, s39, {jj*16384}")
            E(f"  buffer_load_dwordx4 v{V_DW2}, s[{SW}:{SW+3}], s40 offen lds")
        E("  s_add_u32 s38, s38, 512")
        E("  s_add_u32 s39, s39, 0x40000")
        E("  s_add_u32 s43, s43, 49152")
        E("  s_cmp_ge_u32 s43, 147456")
        E("  s_cselect_b32 s43, 0, s43")
    loads()
    loads()
    E("  s_mov_b32 s3, 0")
    E("L2_loop:")
    for kk in range(4):
        E(f"  v_xor_b32 v{V_BA+kk}, {kk*32}, v{V_BB}")
        E(f"  v_add_u32 v{V_BA+kk}, s44, v{V_BA+kk}")
    E(f"  v_add_u32 v{V_AA2}, s44, v{V_AB}")
    E("  s_add_u32 s44, s44, 49152")
    E("  s_cmp_ge_u32 s44, 147456")
    E("  s_cselect_b32 s44, 0, s44")
    E("  s_waitcnt vmcnt(12)")
    E("  s_barrier")
    loads()
    for kk in range(4):
        for j in range(2):
            E(f"  ds_read_b64_tr_b16 {vr(V_Af+kk*4+j*2,2)}, v{V_AA2} offset:{kk*1024 + j*256}")
        for mh in range(2):
            E(f"  ds_read_b128 {vr(V_Bf+(kk*2+mh)*4,4)}, v{V_BA+kk} offset:{mh*16384}")
    for kk in range(4):
        for mh in range(2):
            E(f"  s_waitcnt lgkmcnt({(3-kk)*4 + 1 - mh})")
            mfma(V_D+mh*16, V_Af+kk*4, V_Bf+(kk*2+mh)*4)
    E("  s_add_u32 s3, s3, 1")
    E("  s_cmp_lt_u32 s3, 16")
    E("  s_cbranch_scc1 L2_loop")
    E("  s_waitcnt vmcnt(0)")
    E("  s_nop 7")
    E("  s_nop 7")
    E("  s_barrier")
    E(f"  v_lshlrev_b32 v{T0}, 2, v{VL}")
    E("  s_lshl_b32 s37, s36, 13")
    E(f"  v_add_u32 v{T1}, s37, v{T0}")
    for i in range(32):
        E(f"  ds_write_b32 v{T1}, v{V_D+i} offset:{i*256}")
    E("  s_waitcnt lgkmcnt(0)")
    E("  s_barrier")
    E("  s_lshl_b32 s37, s36, 11")
    E(f"  v_add_u32 v{T1}, s37, v{T0}")
    for w in range(4):
        for i in range(8):
            E(f"  ds_read_b32 v{V_B+w*8+i}, v{T1} offset:{w*8192 + i*256}")
    E("  s_waitcnt lgkmcnt(0)")
    for i in range(8):
        E(f"  v_add_f32 v{V_B+i}, v{V_B+i}, v{V_B+8+i}")
        E(f"  v_add_f32 v{V_B+16+i}, v{V_B+16+i}, v{V_B+24+i}")
    for i in range(8):
        E(f"  v_add_f32 v{V_B+i}, v{V_B+i}, v{V_B+16+i}")
    for r in range(4):
        E(f"  v_cvt_pk_bf16_f32 v{V_A+r}, v{V_B+2*r}, v{V_B+2*r+1}")
    E("  s_nop 1")
    E(f"  v_permlane32_swap_b32 v{V_A}, v{V_A+2}")
    E(f"  v_permlane32_swap_b32 v{V_A+1}, v{V_A+3}")
    E(f"  v_and_b32 v{T0}, 31, v{VL}")
    E(f"  v_lshrrev_b32 v{T3}, 5, v{VL}")
    E(f"  v_lshlrev_b32 v{T0}, 10, v{T0}")
    E(f"  v_lshl_add_u32 v{T0}, v{T3}, 4, v{T0}")
    E("  s_lshr_b32 s37, s36, 1")
    E("  s_lshl_b32 s37, s37, 15")
    E("  s_and_b32 s38, s36, 1")
    E("  s_lshl_b32 s38, s38, 5")
    E("  s_add_u32 s37, s37, s38")
    E(f"  buffer_store_dwordx4 {vr(V_A,4)}, v{T0}, s[{SOUT}:{SOUT+3}], s37 offen")
    E("L2_done:")
    E("  s_endpgm")

def kd(name, nv):
    E(f".amdhsa_kernel {name}")
    E(f"  .amdhsa_next_free_vgpr {nv}")
    E("  .amdhsa_next_free_sgpr 64")
    E(f"  .amdhsa_accum_offset {(nv+3)//4*4}")
    E("  .amdhsa_group_segment_fixed_size 0")
    E("  .amdhsa_kernarg_size 64")
    E("  .amdhsa_user_sgpr_count 2")
    E("  .amdhsa_user_sgpr_kernarg_segment_ptr 1")
    E("  .amdhsa_system_sgpr_workgroup_id_x 1")
    E(".end_amdhsa_kernel")

E(HDR)
kernel1()
kernel2()
E('.section .rodata,"a"')
E(".p2align 6")
kd("standalone__gqa_block_cached__near_ridge_kernel", NV1)
E(".p2align 6")
kd("oproj_kernel", 208)
open(sys.argv[1], "w").write("\n".join(out) + "\n")
```
